```python
import torch

def _softmax(x, axis=-1):
    return torch.softmax(x, dim=axis)

def _gelu(x):
    return torch.nn.functional.gelu(x, approximate='tanh')

def _silu(x):
    return torch.nn.functional.silu(x)

def _sigmoid(x):
    return torch.sigmoid(x)

def _layernorm(x, axis=-1, eps=1e-05):
    m = x.mean(dim=axis, keepdim=True)
    v = x.var(dim=axis, keepdim=True, unbiased=False)
    return (x - m) / torch.sqrt(v + eps)

def _scatter_add(tgt, idx, src, axis=0):
    return tgt.clone().index_add_(axis, idx, src)

def _segment_sum(src, seg, n):
    out = torch.zeros((n,) + src.shape[1:], dtype=src.dtype)
    return out.index_add_(0, seg, src)

def _pad(x, pw):
    flat = tuple((v for pair in reversed(pw) for v in pair))
    return torch.nn.functional.pad(x, flat)
kernel_name = 'standalone__kv_cache_quant_pre_rope_vs_post_rope__prompt'

def setup_inputs():

    _w = lambda a: (lambda t: t.to(torch.bfloat16) if t.is_floating_point() else t)(torch.as_tensor(a))
    B, Sq, Skv = (1, 2048, 2048)
    H, Dh0 = (8, 128)
    G = 32 if 32 > 0 else Dh0
    G = max(2, G // 2 * 2)
    Dh = max(G, Dh0 // G * G)
    Skv = max(Skv, Sq)
    ng = Dh // G
    bits = 8 if 8 > 1 else 4
    bits = max(2, min(8, bits))
    qmax = (1 << bits) - 1
    half = Dh // 2
    inv = 1.0 / 10000.0 ** (torch.arange(half) / max(1, half))
    ang_k = torch.arange(Skv)[:, None] * inv[None, :]
    ang_q = torch.arange(Skv - Sq, Skv)[:, None] * inv[None, :]
    kc = torch.cat([torch.cos(ang_k), torch.cos(ang_k)], dim=-1)
    ks = torch.cat([torch.sin(ang_k), torch.sin(ang_k)], dim=-1)
    qc = torch.cat([torch.cos(ang_q), torch.cos(ang_q)], dim=-1)
    qs = torch.cat([torch.sin(ang_q), torch.sin(ang_q)], dim=-1)
    qk_i = torch.randint(0, qmax + 1, (B, H, Skv, Dh)).to(torch.int32)
    qv_i = torch.randint(0, qmax + 1, (B, H, Skv, Dh)).to(torch.int32)
    ksc = torch.abs((lambda *s: torch.randn(*s, dtype=torch.bfloat16) * 0.05)(B, H, Skv, ng)) * 0.1 + 0.01
    kzp = torch.full((B, H, Skv, ng), qmax / 2.0)
    vsc = torch.abs((lambda *s: torch.randn(*s, dtype=torch.bfloat16) * 0.05)(B, H, Skv, ng)) * 0.1 + 0.01
    vzp = torch.full((B, H, Skv, ng), qmax / 2.0)
    return {'q': _w((lambda *s: torch.randn(*s, dtype=torch.bfloat16) * 0.8)(B, H, Sq, Dh) * 0.5), 'qk': _w(qk_i), 'k_scales': _w(ksc), 'k_zeros': _w(kzp), 'qv': _w(qv_i), 'v_scales': _w(vsc), 'v_zeros': _w(vzp), 'q_cos': _w(qc), 'q_sin': _w(qs), 'k_cos': _w(kc), 'k_sin': _w(ks)}

def reference(q, qk, k_scales, k_zeros, qv, v_scales, v_zeros, q_cos, q_sin, k_cos, k_sin):
    B, H, Sq, Dh = q.shape
    ng = k_scales.shape[-1]
    G = Dh // ng
    half = Dh // 2
    ks = (lambda x, n, axis: torch.repeat_interleave(x, n, dim=axis))(k_scales, G, axis=-1)
    kz = (lambda x, n, axis: torch.repeat_interleave(x, n, dim=axis))(k_zeros, G, axis=-1)
    k = ((lambda x, dt: x.to(dt))(qk, q.dtype) - kz) * ks
    vs = (lambda x, n, axis: torch.repeat_interleave(x, n, dim=axis))(v_scales, G, axis=-1)
    vz = (lambda x, n, axis: torch.repeat_interleave(x, n, dim=axis))(v_zeros, G, axis=-1)
    v = ((lambda x, dt: x.to(dt))(qv, q.dtype) - vz) * vs
    k1 = k[..., :half].clone()
    k2 = k[..., half:].clone()
    krh = torch.concatenate([-k2, k1], axis=-1)
    kr = k * k_cos[None, None, :, :] + krh * k_sin[None, None, :, :]
    q1 = q[..., :half].clone()
    q2 = q[..., half:].clone()
    qrh = torch.concatenate([-q2, q1], axis=-1)
    qr = q * q_cos[None, None, :, :] + qrh * q_sin[None, None, :, :]
    logits = torch.einsum('bhqd,bhkd->bhqk', qr, kr) * float(Dh) ** (-0.5)
    attn = _softmax(logits, axis=-1)
    out = torch.einsum('bhqk,bhkd->bhqd', attn, v)
    return out
```

```python
import math
import struct
import sys

NAME = "standalone__kv_cache_quant_pre_rope_vs_post_rope__prompt"

HEADER = """; Kernarg layout for this problem (112 bytes, ptrs only, base s[0:1]):
;   offset  88: d_out     shape=(1, 8, 2048, 128) dtype=bfloat16 (2 bytes/elem)
"""


def f32bits(x):
    return struct.unpack("<I", struct.pack("<f", x))[0]


class A:
    def __init__(self):
        self.l = []

    def __call__(self, s):
        self.l.append("    " + s)

    def lab(self, s):
        self.l.append(s + ":")

    def c(self, s):
        self.l.append("    ; " + s)

    def raw(self, s):
        self.l.append(s)

    def text(self):
        return "\n".join(self.l) + "\n"


def vr(b, n=1):
    return f"v{b}" if n == 1 else f"v[{b}:{b+n-1}]"


def ar(b, n=1):
    return f"a{b}" if n == 1 else f"a[{b}:{b+n-1}]"


def kd(name, nv, ns, acc):
    return f""".p2align 6
.amdhsa_kernel {name}
  .amdhsa_next_free_vgpr {nv}
  .amdhsa_next_free_sgpr {ns}
  .amdhsa_accum_offset {acc}
  .amdhsa_group_segment_fixed_size 0
  .amdhsa_kernarg_size 112
  .amdhsa_user_sgpr_count 2
  .amdhsa_user_sgpr_kernarg_segment_ptr 1
  .amdhsa_system_sgpr_workgroup_id_x 1
  .amdhsa_float_denorm_mode_32 3
.end_amdhsa_kernel
"""


def rope4(a, lo, hi, cl, ch, sl, sh, out, t, smask):
    for i in range(4):
        def unp(dst, src):
            if i & 1:
                a(f"v_and_b32 v{dst}, {smask}, v{src + (i >> 1)}")
            else:
                a(f"v_lshlrev_b32 v{dst}, 16, v{src + (i >> 1)}")
        unp(t + 0, cl)
        unp(t + 1, sl)
        unp(t + 2, ch)
        unp(t + 3, sh)
        ol = t + 4 + (i & 1)
        oh = t + 6 + (i & 1)
        a(f"v_mul_f32 v{ol}, v{lo+i}, v{t+0}")
        a(f"v_mul_f32 v{oh}, v{hi+i}, v{t+2}")
        a(f"v_fma_f32 v{ol}, -v{hi+i}, v{t+1}, v{ol}")
        a(f"v_fma_f32 v{oh}, v{lo+i}, v{t+3}, v{oh}")
        if i & 1:
            a(f"v_cvt_pk_bf16_f32 v{out + (i >> 1)}, v{t+4}, v{t+5}")
            a(f"v_cvt_pk_bf16_f32 v{out + 2 + (i >> 1)}, v{t+6}, v{t+7}")


def gen_prep(a, opt):
    nt = " nt" if opt.get("prep_nt") else ""
    st = " " + opt["prep_st"] if opt.get("prep_st") else ""
    a.raw(".p2align 8")
    a.raw(".globl prep_kernel")
    a.raw(".type prep_kernel,@function")
    a.lab("prep_kernel")
    a("s_cmp_ge_u32 s2, 256")
    a("s_cbranch_scc1 L_prep_end")
    a("s_load_dwordx4 s[4:7], s[0:1], 8")
    a("s_load_dwordx4 s[8:11], s[0:1], 24")
    a("s_load_dwordx4 s[12:15], s[0:1], 40")
    a("s_load_dwordx4 s[16:19], s[0:1], 72")
    a("s_load_dwordx2 s[20:21], s[0:1], 104")
    if opt.get("prep_map", "head") == "head":
        a("s_and_b32 s22, s2, 7")
        a("s_lshr_b32 s23, s2, 3")
    else:
        a("s_lshr_b32 s22, s2, 5")
        a("s_and_b32 s23, s2, 7")
        a("s_lshl_b32 s23, s23, 2")
        a("s_lshr_b32 s24, s2, 3")
        a("s_and_b32 s24, s24, 3")
        a("s_or_b32 s23, s23, s24")
    a("s_lshl_b32 s23, s23, 6")
    a("s_lshl_b32 s24, s22, 11")
    a("s_add_u32 s24, s24, s23")
    a("s_mov_b32 s25, 0xffff0000")
    a("v_and_b32 v1, 63, v0")
    a("v_lshrrev_b32 v2, 6, v0")
    a("v_lshlrev_b32 v3, 4, v2")
    a("v_and_b32 v4, 15, v1")
    a("v_lshrrev_b32 v5, 4, v1")
    a("v_add_u32 v6, v3, v5")
    a("v_add_u32 v7, s24, v6")
    a("v_lshlrev_b32 v8, 9, v7")
    a("v_lshl_add_u32 v8, v4, 4, v8")
    a("v_add_u32 v8, 0x1000, v8")
    a("v_add_u32 v9, s23, v6")
    a("v_lshlrev_b32 v9, 8, v9")
    a("v_lshl_add_u32 v9, v4, 3, v9")
    a("v_lshlrev_b32 v10, 3, v7")
    a("v_and_b32 v11, 31, v1")
    a("v_lshrrev_b32 v12, 5, v1")
    a("v_lshl_add_u32 v13, v12, 2, v3")
    a("v_add_u32 v13, s24, v13")
    a("v_lshlrev_b32 v14, 9, v13")
    a("v_lshl_add_u32 v14, v11, 4, v14")
    a("v_add_u32 v14, 0x1000, v14")
    a("v_lshrrev_b32 v15, 3, v11")
    a("v_lshlrev_b32 v15, 1, v15")
    a("v_lshl_add_u32 v15, v13, 3, v15")
    KR = 32
    CS = 64
    KS = 96
    VR = 112
    VS = 144
    T = 160
    a("s_waitcnt lgkmcnt(0)")
    for p in range(4):
        a(f"global_load_dwordx4 {vr(KR+8*p,4)}, v8, s[4:5] offset:{-4096+p*2048}{nt}")
        a(f"global_load_dwordx4 {vr(KR+8*p+4,4)}, v8, s[4:5] offset:{-4096+p*2048+256}{nt}")
    for e in range(8):
        off = -4096 + (e & 3) * 512 + (e >> 2) * 4096
        a(f"global_load_dwordx4 {vr(VR+4*e,4)}, v14, s[10:11] offset:{off}{nt}")
    for p in range(4):
        a(f"global_load_dwordx2 {vr(KS+4*p,2)}, v10, s[6:7] offset:{p*32}")
        a(f"global_load_dwordx2 {vr(KS+4*p+2,2)}, v10, s[8:9] offset:{p*32}")
        a(f"global_load_dwordx2 {vr(CS+8*p,2)}, v9, s[16:17] offset:{p*1024}")
        a(f"global_load_dwordx2 {vr(CS+8*p+2,2)}, v9, s[16:17] offset:{p*1024+128}")
        a(f"global_load_dwordx2 {vr(CS+8*p+4,2)}, v9, s[18:19] offset:{p*1024}")
        a(f"global_load_dwordx2 {vr(CS+8*p+6,2)}, v9, s[18:19] offset:{p*1024+128}")
    for e in range(8):
        off = ((e & 3) + 8 * (e >> 2)) * 8
        a(f"global_load_ushort v{VS+e}, v15, s[12:13] offset:{off}")
        a(f"global_load_ushort v{VS+8+e}, v15, s[14:15] offset:{off}")
    a("v_cmp_lt_u32 vcc, 7, v4")
    a("v_mov_b32 v16, 0x01000c0c")
    a("v_mov_b32 v17, 0x03020c0c")
    a("v_cndmask_b32 v16, v16, v17, vcc")
    a("v_mul_u32_u24 v17, 4352, v2")
    a("v_mul_u32_u24 v18, 272, v4")
    a("v_add_u32 v18, v18, v17")
    a("v_lshl_add_u32 v18, v5, 4, v18")
    a("v_mul_u32_u24 v19, 272, v5")
    a("v_add_u32 v19, v19, v17")
    a("v_lshl_add_u32 v19, v4, 4, v19")
    a("v_add_u32 v20, s24, v3")
    a("v_lshrrev_b32 v20, 5, v20")
    a("v_lshlrev_b32 v20, 14, v20")
    a("v_and_b32 v21, 1, v2")
    a("v_lshl_add_u32 v22, v21, 8, v20")
    a("v_lshl_add_u32 v22, v5, 9, v22")
    a("v_lshl_add_u32 v22, v4, 4, v22")
    a("v_add_u32 v22, 0x1000, v22")
    a("v_lshl_add_u32 v23, v21, 12, v20")
    a("v_lshl_add_u32 v23, v1, 4, v23")
    a("v_add_u32 v23, 0x2000, v23")
    for p in range(4):
        a(f"s_waitcnt vmcnt({16 + 6*(3-p)})")
        sl, sh, zl, zh = T + 8, T + 9, T + 10, T + 11
        a(f"v_perm_b32 v{sl}, v{KS+4*p}, v{KS+4*p}, v16")
        a(f"v_perm_b32 v{sh}, v{KS+4*p+1}, v{KS+4*p+1}, v16")
        a(f"v_perm_b32 v{zl}, v{KS+4*p+2}, v{KS+4*p+2}, v16")
        a(f"v_perm_b32 v{zh}, v{KS+4*p+3}, v{KS+4*p+3}, v16")
        a(f"v_mul_f32 v{zl}, v{zl}, v{sl}")
        a(f"v_mul_f32 v{zh}, v{zh}, v{sh}")
        for i in range(8):
            a(f"v_cvt_f32_i32 v{KR+8*p+i}, v{KR+8*p+i}")
        for i in range(8):
            s_, z_ = (sl, zl) if i < 4 else (sh, zh)
            a(f"v_fma_f32 v{KR+8*p+i}, v{KR+8*p+i}, v{s_}, -v{z_}")
        out = T + 12 + 4 * p
        rope4(a, KR + 8 * p, KR + 8 * p + 4, CS + 8 * p, CS + 8 * p + 2, CS + 8 * p + 4, CS + 8 * p + 6, out, T, "s25")
        a(f"ds_write_b128 v18, {vr(out,4)} offset:{p*64}")
    a("s_waitcnt lgkmcnt(0)")
    for t in range(4):
        a(f"ds_read_b128 {vr(KR+4*t,4)}, v19 offset:{t*4*272}")
    a("s_waitcnt vmcnt(0)")
    for e in range(8):
        a(f"v_lshlrev_b32 v{VS+e}, 16, v{VS+e}")
        a(f"v_lshlrev_b32 v{VS+8+e}, 16, v{VS+8+e}")
        a(f"v_mul_f32 v{VS+8+e}, v{VS+8+e}, v{VS+e}")
    for t in range(4):
        a(f"s_waitcnt lgkmcnt({3-t})")
        a(f"global_store_dwordx4 v22, {vr(KR+4*t,4)}, s[20:21] offset:{-4096+t*2048}{st}")
    VO = 64
    for b in range(4):
        for e in range(8):
            r = VR + 4 * e + b
            a(f"v_cvt_f32_i32 v{r}, v{r}")
        for e in range(8):
            r = VR + 4 * e + b
            a(f"v_fma_f32 v{r}, v{r}, v{VS+e}, -v{VS+8+e}")
        for m in range(4):
            a(f"v_cvt_pk_bf16_f32 v{VO+4*b+m}, v{VR+8*m+b}, v{VR+8*m+4+b}")
        a(f"global_store_dwordx4 v23, {vr(VO+4*b,4)}, s[20:21] offset:{b*1024}{st}")
    a.lab("L_prep_end")
    a("s_endpgm")


O_ = 0
S_ = 128
P_ = 160
M_ = 176
L_ = 208
VOFF = 212
VTID = 216
T_ = 220
QA = 0
KB = 64
VB = 128

LDS_X = 0
LDS_Q = 98304
LDS_ST = LDS_Q + 16896
LDS_MX = LDS_ST + 1024
LDS_TOTAL = LDS_MX + 1024

SRD = "s[8:11]"
S_K = "s20"
S_V = "s21"
S_T = "s22"
S_BASE = "s23"
S_CNT = "s24"
S_FLAG = "s25"
S_W = "s26"
S_BIG = "s27"
S_T0 = "s28"


def ldK(a, buf, j, opt):
    a(f"buffer_load_dwordx4 {ar(KB+32*buf+4*j,4)}, v{VOFF+(j>>2)}, {SRD}, {S_K} offen offset:{(j&3)*1024}")


def ldV(a, buf, n, opt):
    a(f"buffer_load_dwordx4 {ar(VB+32*buf+4*n,4)}, v{VOFF+2+(n>>2)}, {SRD}, {S_V} offen offset:{(n&3)*1024}")


def mf_qk(a, x, j, kbuf):
    c = vr(M_ + 16 * x, 16) if j == 0 else vr(S_ + 16 * x, 16)
    a(f"v_mfma_f32_32x32x16_bf16 {vr(S_+16*x,16)}, {ar(KB+32*kbuf+4*j,4)}, {ar(QA+32*x+4*j,4)}, {c}")


def mf_pv(a, x, n, vbuf):
    s, b = n >> 2, n & 3
    o = vr(O_ + 64 * x + 16 * b, 16)
    a(f"v_mfma_f32_32x32x16_bf16 {o}, {vr(P_+8*x+4*s,4)}, {ar(VB+32*vbuf+4*n,4)}, {o}")


def sm_exp(a, x, k, opt):
    sfx = "_e64" if opt.get("e64") else ""
    a(f"v_exp_f32{sfx} v{S_+16*x+k}, v{S_+16*x+k}")


def sm_add(a, x, k, opt):
    sfx = "_e64" if opt.get("e64") else ""
    a(f"v_add_f32{sfx} v{L_+2*x+(k&1)}, v{L_+2*x+(k&1)}, v{S_+16*x+k}")


def sm_cvt(a, x, m):
    a(f"v_cvt_pk_bf16_f32 v{P_+8*x+m}, v{S_+16*x+2*m}, v{S_+16*x+2*m+1}")


def next_tile(a):
    return [
        f"s_mov_b32 {S_V}, {S_K}",
        f"s_add_u32 {S_T}, {S_T}, 0x4000",
        f"s_and_b32 {S_T}, {S_T}, 0x3ffff",
        f"s_or_b32 {S_K}, {S_T}, {S_BASE}",
    ]


def iteration(a, par, opt):
    E0 = 10
    waits = {0: 16, 4: 14, 24: 20, 28: 18}
    for g in range(32):
        if g in waits:
            a(f"s_waitcnt vmcnt({waits[g]})")
        if g < 8:
            mf_qk(a, 0, g, par)
        elif g < 16:
            mf_pv(a, 1, g - 8, par ^ 1)
        elif g < 24:
            mf_qk(a, 1, g - 16, par)
        else:
            mf_pv(a, 0, g - 24, par)
        k = (g - E0) % 32
        sm_exp(a, k >> 4, k & 15, opt)
        k = (g - E0 - 1) % 32
        sm_add(a, k >> 4, k & 15, opt)
        if g % 2 == 0:
            k = (g - E0 - 2) % 32
            sm_cvt(a, k >> 4, (k & 15) >> 1)
        else:
            if 9 <= g <= 23:
                ldV(a, par ^ 1, (g - 9) // 2, opt)
            elif g >= 25:
                ldK(a, par, (g - 25) // 2, opt)
            else:
                ldK(a, par ^ 1, (g + 7) // 2, opt)
        if g == 8:
            a(f"s_mov_b32 {S_V}, {S_K}")
            a(f"s_add_u32 {S_T}, {S_T}, 0x4000")
        if g == 10:
            a(f"s_and_b32 {S_T}, {S_T}, 0x3ffff")
            a(f"s_cmp_eq_u32 {S_T}, {S_T0}")
        if g == 12:
            a(f"s_cselect_b32 {S_BASE}, {S_BIG}, {S_BASE}")
            a(f"s_or_b32 {S_K}, {S_T}, {S_BASE}")


def gen_attn(a, opt):
    a.raw(".p2align 8")
    a.raw(".globl attn_kernel")
    a.raw(".type attn_kernel,@function")
    a.lab("attn_kernel")
    a("s_cmp_ge_u32 s2, 256")
    a("s_cbranch_scc1 L_attn_end")
    a("s_load_dwordx2 s[8:9], s[0:1], 104")
    a("s_load_dwordx2 s[4:5], s[0:1], 0")
    a("s_load_dwordx4 s[12:15], s[0:1], 56")
    a("s_load_dwordx2 s[6:7], s[0:1], 88")
    a("s_mov_b32 s10, 0x800000")
    a("s_mov_b32 s11, 0x20000")
    a("s_and_b32 s16, s2, 7")
    a("s_lshr_b32 s17, s2, 3")
    t = T_
    lane, w, c16, ks = VTID, VTID + 1, t + 2, t + 3
    a(f"v_lshrrev_b32 v{w}, 6, v0")
    a(f"v_and_b32 v{lane}, 63, v0")
    a(f"v_readfirstlane_b32 {S_W}, v{w}")
    a(f"v_and_b32 v{c16}, 15, v{lane}")
    a(f"v_lshrrev_b32 v{ks}, 4, v{lane}")
    a("s_lshl_b32 s18, s17, 6")
    a("s_lshl_b32 s19, s16, 11")
    a("s_add_u32 s19, s19, s18")
    a(f"v_lshl_add_u32 v{t+4}, v{w}, 4, v{ks}")
    a(f"v_add_u32 v{t+5}, s18, v{t+4}")
    a(f"v_lshlrev_b32 v{t+5}, 8, v{t+5}")
    a(f"v_lshl_add_u32 v{t+5}, v{c16}, 3, v{t+5}")
    a("s_lshl_b32 s30, s16, 19")
    a(f"v_add_u32 v{t+6}, s30, v{t+5}")
    a(f"v_lshlrev_b32 v{VOFF}, 4, v{lane}")
    for k in range(1, 4):
        a(f"v_add_u32 v{VOFF+k}, {hex(4096*k)}, v{VOFF}")
    a(f"s_lshl_b32 s29, s16, 20")
    a(f"s_lshl_b32 s30, {S_W}, 18")
    a(f"s_or_b32 s29, s29, s30")
    if opt.get("rot", 1):
        a(f"s_and_b32 {S_T0}, s17, 15")
        a(f"s_lshl_b32 {S_T0}, {S_T0}, 14")
    else:
        a(f"s_mov_b32 {S_T0}, 0")
    a(f"s_mov_b32 {S_BIG}, 0x08000000")
    a(f"s_mov_b32 {S_FLAG}, 0")
    a("s_mov_b32 s31, 0xffff0000")
    a(f"s_mov_b32 s32, {hex(f32bits(math.log2(math.e) / math.sqrt(128.0)))}")
    a("s_waitcnt lgkmcnt(0)")
    for p in range(4):
        b = 12 * p
        a(f"global_load_dwordx2 {vr(b,2)}, v{t+6}, s[4:5] offset:{p*1024}")
        a(f"global_load_dwordx2 {vr(b+2,2)}, v{t+6}, s[4:5] offset:{p*1024+128}")
        a(f"global_load_dwordx2 {vr(b+4,2)}, v{t+5}, s[12:13] offset:{p*1024}")
        a(f"global_load_dwordx2 {vr(b+6,2)}, v{t+5}, s[12:13] offset:{p*1024+128}")
        a(f"global_load_dwordx2 {vr(b+8,2)}, v{t+5}, s[14:15] offset:{p*1024}")
        a(f"global_load_dwordx2 {vr(b+10,2)}, v{t+5}, s[14:15] offset:{p*1024+128}")

    def first_loads():
        a(f"s_mov_b32 {S_BASE}, s29")
        a(f"s_mov_b32 {S_T}, {S_T0}")
        a(f"s_or_b32 {S_K}, {S_T}, {S_BASE}")
        for j in range(8):
            ldK(a, 0, j, opt)
        for s_ in next_tile(a):
            a(s_)
        for n in range(8):
            ldV(a, 0, n, opt)
        for j in range(4):
            ldK(a, 1, j, opt)

    first_loads()
    for r in range(32):
        a(f"v_mov_b32 v{M_+r}, 0")
    a(f"v_lshrrev_b32 v{t+7}, 1, v{w}")
    a(f"v_mul_u32_u24 v{t+7}, 8448, v{t+7}")
    a(f"v_mul_u32_u24 v{t+8}, 528, v{c16}")
    a(f"v_add_u32 v{t+7}, v{t+7}, v{t+8}")
    a(f"v_and_b32 v{t+8}, 31, v{t+4}")
    a(f"v_lshl_add_u32 v{t+7}, v{t+8}, 4, v{t+7}")
    a(f"v_lshlrev_b32 v{t+9}, 3, v{w}")
    a(f"v_xor_b32 v{VTID+2}, v{t+9}, v{lane}")
    a(f"v_and_b32 v{t+8}, 31, v{VTID+2}")
    a(f"v_lshrrev_b32 v{t+9}, 5, v{lane}")
    a(f"v_mul_u32_u24 v{t+9}, 528, v{t+9}")
    a(f"v_lshl_add_u32 v{t+8}, v{t+8}, 4, v{t+9}")
    a(f"v_add_u32 v{t+7}, {LDS_Q}, v{t+7}")
    a(f"v_add_u32 v{t+8}, {LDS_Q}, v{t+8}")
    for p in range(4):
        b = 12 * p
        a(f"s_waitcnt vmcnt({20 + 6*(3-p)})")
        lo, hi = 64, 68
        for i in range(4):
            for (dst, src) in ((lo + i, b + (i >> 1)), (hi + i, b + 2 + (i >> 1))):
                if i & 1:
                    a(f"v_and_b32 v{dst}, s31, v{src}")
                else:
                    a(f"v_lshlrev_b32 v{dst}, 16, v{src}")
                a(f"v_mul_f32 v{dst}, s32, v{dst}")
        out = 80 + 4 * p
        rope4(a, lo, hi, b + 4, b + 6, b + 8, b + 10, out, 72, "s31")
        a(f"ds_write_b128 v{t+7}, {vr(out,4)} offset:{p*64}")
    a("s_waitcnt lgkmcnt(0)")
    a("s_barrier")
    for x in range(2):
        for j in range(8):
            a(f"ds_read_b128 {ar(QA+32*x+4*j,4)}, v{t+8} offset:{x*8448+j*1056}")
    a.lab("L_restart")
    for r in range(128):
        a(f"v_mov_b32 v{O_+r}, 0")
    for r in range(32):
        a(f"v_accvgpr_write_b32 a{VB+32+r}, 0")
    for r in range(4):
        a(f"v_mov_b32 v{L_+r}, 0")
    for r in range(2):
        a(f"v_mov_b32 v{P_+8+r}, 0")
    a(f"v_mov_b32 v{S_+16+4}, 0")
    a(f"v_mov_b32 v{S_+16+5}, 0")
    for r in range(6, 16):
        a(f"v_mov_b32 v{S_+16+r}, 0xff800000")
    a(f"s_mov_b32 {S_CNT}, 8")
    a("s_waitcnt lgkmcnt(0)")
    a.raw(".p2align 6")
    a.lab("L_loop")
    iteration(a, 0, opt)
    a(f"s_sub_u32 {S_CNT}, {S_CNT}, 1")
    iteration(a, 1, opt)
    a(f"s_cmp_lg_u32 {S_CNT}, 0")
    a("s_cbranch_scc1 L_loop")
    xa = [T_ + 10, T_ + 11, T_ + 12]
    sm_add(a, 1, 5, opt)
    sm_cvt(a, 1, 2)
    for k in range(6, 16):
        sm_exp(a, 1, k, opt)
    for u in range(1, 4):
        a(f"s_xor_b32 s33, {S_W}, {u}")
        a(f"s_mul_i32 s33, s33, {3*8192}")
        a(f"s_add_u32 s33, s33, {(u-1)*8192 + LDS_X}")
        a(f"v_add_u32 v{xa[u-1]}, s33, v{VOFF}")
    for m in range(3, 8):
        sm_cvt(a, 1, m)
    for k in range(6, 16):
        sm_add(a, 1, k, opt)
    wl = [(u, b) for u in range(1, 4) for b in range(4)]
    for n in range(8):
        mf_pv(a, 1, n, 1)
        for (u, b) in wl[n * 2:n * 2 + 2]:
            a(f"ds_write_b128 v{xa[u-1]}, {vr(O_+16*b+4*u,4)} offset:{b*1024}")
    a(f"v_add_f32 v{L_}, v{L_}, v{L_+1}")
    a(f"v_add_f32 v{L_+2}, v{L_+2}, v{L_+3}")
    a(f"v_lshlrev_b32 v{t+13}, 2, v{VTID+2}")
    a(f"s_lshl_b32 s33, {S_W}, 8")
    a(f"v_permlane32_swap_b32 v{L_}, v{L_+2}")
    a(f"s_add_u32 s33, s33, {LDS_ST}")
    a(f"v_add_u32 v{t+13}, s33, v{t+13}")
    a(f"v_add_f32 v{L_}, v{L_}, v{L_+2}")
    a(f"ds_write_b32 v{t+13}, v{L_}")
    a(f"s_mul_i32 s33, {S_W}, {3*8192}")
    a(f"v_add_u32 v{t+14}, s33, v{VOFF}")
    a(f"v_lshlrev_b32 v{t+15}, 2, v{lane}")
    a(f"v_add_u32 v{t+15}, {LDS_ST}, v{t+15}")
    a(f"v_lshrrev_b32 v{t+16}, 5, v{lane}")
    a(f"s_lshl_b32 s33, {S_W}, 5")
    a(f"s_add_u32 s33, s33, {LDS_ST}")
    a(f"v_lshl_add_u32 v{t+17}, v{t+16}, 4, s33")
    a("s_nop 1")
    for (u, b) in wl:
        a(f"ds_write_b128 v{xa[u-1]}, {vr(O_+64+16*b+4*u,4)} offset:{4096+b*1024}")
    a("s_waitcnt vmcnt(0) lgkmcnt(0)")
    a("s_barrier")
    for ww in range(4):
        a(f"ds_read_b32 v{S_+ww}, v{t+15} offset:{ww*256}")
    for x in range(2):
        for ww in range(4):
            a(f"ds_read_b128 {vr(M_+16*x+4*ww,4)}, v{t+17} offset:{ww*256+x*128}")
    a("s_waitcnt lgkmcnt(8)")
    a(f"v_add_f32 v{S_}, v{S_}, v{S_+1}")
    a(f"v_add_f32 v{S_+2}, v{S_+2}, v{S_+3}")
    a(f"v_add_f32 v{S_}, v{S_}, v{S_+2}")
    a(f"s_mov_b32 s33, {hex(f32bits(2.0**-30))}")
    a(f"s_mov_b32 s34, {hex(f32bits(2.0**30))}")
    a(f"v_cmp_nle_f32 vcc, s33, v{S_}")
    a(f"v_cmp_nge_f32 s[36:37], s34, v{S_}")
    a("s_nop 1")
    a("s_or_b64 vcc, vcc, s[36:37]")
    a("s_cmp_eq_u64 vcc, 0")
    a("s_cbranch_scc1 L_good")
    a(f"s_cmp_eq_u32 {S_FLAG}, 0")
    a("s_cbranch_scc1 L_fallback")
    a.lab("L_good")
    for u in range(1, 4):
        for x in range(2):
            for b in range(4):
                a(f"ds_read_b128 {vr(O_+64*x+16*b+4*u,4)}, v{t+14} offset:{(u-1)*8192+x*4096+b*1024}")
        if u == 1:
            a("s_waitcnt lgkmcnt(8)")
            for x in range(2):
                m = M_ + 16 * x
                for i in (0, 2):
                    a(f"v_pk_add_f32 {vr(m+i,2)}, {vr(m+i,2)}, {vr(m+4+i,2)}")
                    a(f"v_pk_add_f32 {vr(m+8+i,2)}, {vr(m+8+i,2)}, {vr(m+12+i,2)}")
                for i in (0, 2):
                    a(f"v_pk_add_f32 {vr(m+i,2)}, {vr(m+i,2)}, {vr(m+8+i,2)}")
                for i in range(4):
                    a(f"v_rcp_f32 v{m+i}, v{m+i}")
    a(f"s_lshl_b32 s33, {S_W}, 3")
    a("s_add_u32 s33, s33, s19")
    a(f"v_lshl_add_u32 v{t+18}, v{t+16}, 2, s33")
    a(f"v_lshlrev_b32 v{t+18}, 8, v{t+18}")
    a(f"v_and_b32 v{t+19}, 31, v{lane}")
    a(f"v_lshl_add_u32 v{t+18}, v{t+19}, 3, v{t+18}")
    a(f"v_add_u32 v{t+19}, 0x2000, v{t+18}")
    a("s_waitcnt lgkmcnt(0)")
    for x in range(2):
        for b in range(4):
            o = O_ + 64 * x + 16 * b
            for i in (0, 2):
                a(f"v_pk_add_f32 {vr(o+i,2)}, {vr(o+i,2)}, {vr(o+4+i,2)}")
                a(f"v_pk_add_f32 {vr(o+8+i,2)}, {vr(o+8+i,2)}, {vr(o+12+i,2)}")
            for i in (0, 2):
                a(f"v_pk_add_f32 {vr(o+i,2)}, {vr(o+i,2)}, {vr(o+8+i,2)}")
            for i in (0, 2):
                a(f"v_pk_mul_f32 {vr(o+i,2)}, {vr(o+i,2)}, {vr(M_+16*x+i,2)}")
        for i in range(4):
            o = O_ + 64 * x
            d = S_ + 8 * x + 2 * i
            a(f"v_cvt_pk_bf16_f32 v{d}, v{o+i}, v{o+16+i}")
            a(f"v_cvt_pk_bf16_f32 v{d+1}, v{o+32+i}, v{o+48+i}")
            a(f"global_store_dwordx2 v{t+18+x}, {vr(d,2)}, s[6:7] offset:{i*256}")
    a.lab("L_attn_end")
    a("s_endpgm")

    a.lab("L_fallback")
    a(f"s_mov_b32 {S_FLAG}, 1")
    a("s_waitcnt lgkmcnt(0)")
    a(f"v_mov_b32 v{L_}, 0xff800000")
    a(f"v_mov_b32 v{L_+2}, 0xff800000")
    a(f"s_mov_b32 {S_K}, s29")
    a(f"s_mov_b32 {S_CNT}, 16")
    a.lab("L_maxloop")
    for j in range(8):
        ldK(a, 0, j, opt)
    a("s_waitcnt vmcnt(0)")
    for x in range(2):
        for j in range(8):
            c = "0" if j == 0 else vr(S_ + 16 * x, 16)
            a(f"v_mfma_f32_32x32x16_bf16 {vr(S_+16*x,16)}, {ar(KB+4*j,4)}, {ar(QA+32*x+4*j,4)}, {c}")
    a("s_nop 15")
    for x in range(2):
        for k in range(0, 16, 2):
            a(f"v_max3_f32 v{L_+2*x}, v{L_+2*x}, v{S_+16*x+k}, v{S_+16*x+k+1}")
    a(f"s_add_u32 {S_K}, {S_K}, 0x4000")
    a(f"s_sub_u32 {S_CNT}, {S_CNT}, 1")
    a(f"s_cmp_lg_u32 {S_CNT}, 0")
    a("s_cbranch_scc1 L_maxloop")
    a("s_nop 1")
    a(f"v_permlane32_swap_b32 v{L_}, v{L_+2}")
    a("s_nop 1")
    a(f"v_max_f32 v{L_}, v{L_}, v{L_+2}")
    a(f"ds_write_b32 v{t+13}, v{L_} offset:{LDS_MX-LDS_ST}")
    a(f"v_lshlrev_b32 v{t+20}, 2, v{VTID+2}")
    a(f"v_add_u32 v{t+20}, {LDS_MX}, v{t+20}")
    a("s_waitcnt lgkmcnt(0)")
    a("s_barrier")
    for ww in range(4):
        a(f"ds_read_b32 v{S_+ww}, v{t+20} offset:{ww*256}")
    a("s_waitcnt lgkmcnt(0)")
    a(f"v_max3_f32 v{S_}, v{S_}, v{S_+1}, v{S_+2}")
    a(f"v_max_f32 v{S_}, v{S_}, v{S_+3}")
    a(f"v_sub_f32 v{S_}, 0, v{S_}")
    a(f"v_mov_b32 v{S_+1}, v{S_}")
    a("s_nop 1")
    a(f"v_permlane32_swap_b32 v{S_}, v{S_+1}")
    a("s_nop 1")
    for r in range(32):
        a(f"v_mov_b32 v{M_+r}, v{S_+(r>>4)}")
    first_loads()
    a("s_branch L_restart")


def build(opt):
    a = A()
    a.raw(HEADER.rstrip())
    a.raw("; @launch kernel=prep_kernel grid=(256,1,1) block=(256,1,1) lds=17408")
    a.raw(f"; @launch kernel=attn_kernel grid=(256,1,1) block=(256,1,1) lds={LDS_TOTAL}")
    a.raw('.amdgcn_target "amdgcn-amd-amdhsa--gfx950"')
    a.raw(".text")
    gen_prep(a, opt)
    gen_attn(a, opt)
    a.raw('.section .rodata,"a"')
    a.raw(kd("prep_kernel", 192, 40, 192))
    a.raw(kd("attn_kernel", 512, 40, 256))
    return a.text()


if __name__ == "__main__":
    opt = {}
    out = f"cdna_kernels/{NAME}.s"
    for arg in sys.argv[1:]:
        k, _, v = arg.partition("=")
        if k == "out":
            out = v
        else:
            try:
                v = int(v)
            except ValueError:
                pass
            opt[k] = v
    open(out, "w").write(build(opt))
    print("wrote", out)
```

```python
import math
import struct
import sys

NAME = "standalone__kv_cache_quant_pre_rope_vs_post_rope__prompt"

HEADER = """; Kernarg layout for this problem (112 bytes, ptrs only, base s[0:1]):
;   offset  88: d_out     shape=(1, 8, 2048, 128) dtype=bfloat16 (2 bytes/elem)
"""


def f32bits(x):
    return struct.unpack("<I", struct.pack("<f", x))[0]


class A:
    def __init__(self):
        self.l = []

    def __call__(self, s):
        self.l.append("    " + s)

    def lab(self, s):
        self.l.append(s + ":")

    def c(self, s):
        self.l.append("    ; " + s)

    def raw(self, s):
        self.l.append(s)

    def text(self):
        return "\n".join(self.l) + "\n"


def vr(b, n=1):
    return f"v{b}" if n == 1 else f"v[{b}:{b+n-1}]"


def ar(b, n=1):
    return f"a{b}" if n == 1 else f"a[{b}:{b+n-1}]"


def kd(name, nv, ns, acc):
    return f""".p2align 6
.amdhsa_kernel {name}
  .amdhsa_next_free_vgpr {nv}
  .amdhsa_next_free_sgpr {ns}
  .amdhsa_accum_offset {acc}
  .amdhsa_group_segment_fixed_size 0
  .amdhsa_kernarg_size 112
  .amdhsa_user_sgpr_count 2
  .amdhsa_user_sgpr_kernarg_segment_ptr 1
  .amdhsa_system_sgpr_workgroup_id_x 1
  .amdhsa_float_denorm_mode_32 3
.end_amdhsa_kernel
"""


def rope4(a, lo, hi, cl, ch, sl, sh, out, t, smask):
    for i in range(4):
        def unp(dst, src):
            if i & 1:
                a(f"v_and_b32 v{dst}, {smask}, v{src + (i >> 1)}")
            else:
                a(f"v_lshlrev_b32 v{dst}, 16, v{src + (i >> 1)}")
        unp(t + 0, cl)
        unp(t + 1, sl)
        unp(t + 2, ch)
        unp(t + 3, sh)
        ol = t + 4 + (i & 1)
        oh = t + 6 + (i & 1)
        a(f"v_mul_f32 v{ol}, v{lo+i}, v{t+0}")
        a(f"v_mul_f32 v{oh}, v{hi+i}, v{t+2}")
        a(f"v_fma_f32 v{ol}, -v{hi+i}, v{t+1}, v{ol}")
        a(f"v_fma_f32 v{oh}, v{lo+i}, v{t+3}, v{oh}")
        if i & 1:
            a(f"v_cvt_pk_bf16_f32 v{out + (i >> 1)}, v{t+4}, v{t+5}")
            a(f"v_cvt_pk_bf16_f32 v{out + 2 + (i >> 1)}, v{t+6}, v{t+7}")


def gen_prep(a, opt):
    nt = " nt" if opt.get("prep_nt") else ""
    st = " " + opt["prep_st"] if opt.get("prep_st") else ""
    a.raw(".p2align 8")
    a.raw(".globl prep_kernel")
    a.raw(".type prep_kernel,@function")
    a.lab("prep_kernel")
    a("s_cmp_ge_u32 s2, 256")
    a("s_cbranch_scc1 L_prep_end")
    stamp(a, opt, 0)
    if opt.get("spin"):
        a("s_memrealtime s[36:37]")
    a("s_load_dwordx4 s[4:7], s[0:1], 8")
    a("s_load_dwordx4 s[8:11], s[0:1], 24")
    a("s_load_dwordx4 s[12:15], s[0:1], 40")
    a("s_load_dwordx4 s[16:19], s[0:1], 72")
    a("s_load_dwordx2 s[20:21], s[0:1], 104")
    if opt.get("prep_map", "head") == "head":
        a("s_and_b32 s22, s2, 7")
        a("s_lshr_b32 s23, s2, 3")
    else:
        a("s_lshr_b32 s22, s2, 5")
        a("s_and_b32 s23, s2, 7")
        a("s_lshl_b32 s23, s23, 2")
        a("s_lshr_b32 s24, s2, 3")
        a("s_and_b32 s24, s24, 3")
        a("s_or_b32 s23, s23, s24")
    a("s_lshl_b32 s23, s23, 6")
    a("s_lshl_b32 s24, s22, 11")
    a("s_add_u32 s24, s24, s23")
    a("s_mov_b32 s25, 0xffff0000")
    a("v_and_b32 v1, 63, v0")
    a("v_lshrrev_b32 v2, 6, v0")
    a("v_lshlrev_b32 v3, 4, v2")
    a("v_and_b32 v4, 15, v1")
    a("v_lshrrev_b32 v5, 4, v1")
    a("v_add_u32 v6, v3, v5")
    a("v_add_u32 v7, s24, v6")
    a("v_lshlrev_b32 v8, 9, v7")
    a("v_lshl_add_u32 v8, v4, 4, v8")
    a("v_add_u32 v8, 0x1000, v8")
    a("v_add_u32 v9, s23, v6")
    a("v_lshlrev_b32 v9, 8, v9")
    a("v_lshl_add_u32 v9, v4, 3, v9")
    a("v_lshlrev_b32 v10, 3, v7")
    a("v_and_b32 v11, 31, v1")
    a("v_lshrrev_b32 v12, 5, v1")
    a("v_lshl_add_u32 v13, v12, 2, v3")
    a("v_add_u32 v13, s24, v13")
    a("v_lshlrev_b32 v14, 9, v13")
    a("v_lshl_add_u32 v14, v11, 4, v14")
    a("v_add_u32 v14, 0x1000, v14")
    a("v_lshrrev_b32 v15, 3, v11")
    a("v_lshlrev_b32 v15, 1, v15")
    a("v_lshl_add_u32 v15, v13, 3, v15")
    KR = 32
    CS = 64
    KS = 96
    VR = 112
    VS = 144
    T = 160
    a("s_waitcnt lgkmcnt(0)")
    for p in range(4):
        a(f"global_load_dwordx4 {vr(KR+8*p,4)}, v8, s[4:5] offset:{-4096+p*2048}{nt}")
        a(f"global_load_dwordx4 {vr(KR+8*p+4,4)}, v8, s[4:5] offset:{-4096+p*2048+256}{nt}")
    for e in range(8):
        off = -4096 + (e & 3) * 512 + (e >> 2) * 4096
        a(f"global_load_dwordx4 {vr(VR+4*e,4)}, v14, s[10:11] offset:{off}{nt}")
    for p in range(4):
        a(f"global_load_dwordx2 {vr(KS+4*p,2)}, v10, s[6:7] offset:{p*32}")
        a(f"global_load_dwordx2 {vr(KS+4*p+2,2)}, v10, s[8:9] offset:{p*32}")
        a(f"global_load_dwordx2 {vr(CS+8*p,2)}, v9, s[16:17] offset:{p*1024}")
        a(f"global_load_dwordx2 {vr(CS+8*p+2,2)}, v9, s[16:17] offset:{p*1024+128}")
        a(f"global_load_dwordx2 {vr(CS+8*p+4,2)}, v9, s[18:19] offset:{p*1024}")
        a(f"global_load_dwordx2 {vr(CS+8*p+6,2)}, v9, s[18:19] offset:{p*1024+128}")
    for e in range(8):
        off = ((e & 3) + 8 * (e >> 2)) * 8
        a(f"global_load_ushort v{VS+e}, v15, s[12:13] offset:{off}")
        a(f"global_load_ushort v{VS+8+e}, v15, s[14:15] offset:{off}")
    a("v_cmp_lt_u32 vcc, 7, v4")
    a("v_mov_b32 v16, 0x01000c0c")
    a("v_mov_b32 v17, 0x03020c0c")
    a("v_cndmask_b32 v16, v16, v17, vcc")
    a("v_mul_u32_u24 v17, 4352, v2")
    a("v_mul_u32_u24 v18, 272, v4")
    a("v_add_u32 v18, v18, v17")
    a("v_lshl_add_u32 v18, v5, 4, v18")
    a("v_mul_u32_u24 v19, 272, v5")
    a("v_add_u32 v19, v19, v17")
    a("v_lshl_add_u32 v19, v4, 4, v19")
    a("v_add_u32 v20, s24, v3")
    a("v_lshrrev_b32 v20, 5, v20")
    a("v_lshlrev_b32 v20, 14, v20")
    a("v_and_b32 v21, 1, v2")
    a("v_lshl_add_u32 v22, v21, 8, v20")
    a("v_lshl_add_u32 v22, v5, 9, v22")
    a("v_lshl_add_u32 v22, v4, 4, v22")
    a("v_add_u32 v22, 0x1000, v22")
    a("v_lshl_add_u32 v23, v21, 12, v20")
    a("v_lshl_add_u32 v23, v1, 4, v23")
    a("v_add_u32 v23, 0x2000, v23")
    stamp(a, opt, 1)
    for p in range(4):
        a(f"s_waitcnt vmcnt({16 + 6*(3-p)})")
        if p == 0:
            stamp(a, opt, 2)
        sl, sh, zl, zh = T + 8, T + 9, T + 10, T + 11
        a(f"v_perm_b32 v{sl}, v{KS+4*p}, v{KS+4*p}, v16")
        a(f"v_perm_b32 v{sh}, v{KS+4*p+1}, v{KS+4*p+1}, v16")
        a(f"v_perm_b32 v{zl}, v{KS+4*p+2}, v{KS+4*p+2}, v16")
        a(f"v_perm_b32 v{zh}, v{KS+4*p+3}, v{KS+4*p+3}, v16")
        a(f"v_mul_f32 v{zl}, v{zl}, v{sl}")
        a(f"v_mul_f32 v{zh}, v{zh}, v{sh}")
        for i in range(8):
            a(f"v_cvt_f32_i32 v{KR+8*p+i}, v{KR+8*p+i}")
        for i in range(8):
            s_, z_ = (sl, zl) if i < 4 else (sh, zh)
            a(f"v_fma_f32 v{KR+8*p+i}, v{KR+8*p+i}, v{s_}, -v{z_}")
        out = T + 12 + 4 * p
        rope4(a, KR + 8 * p, KR + 8 * p + 4, CS + 8 * p, CS + 8 * p + 2, CS + 8 * p + 4, CS + 8 * p + 6, out, T, "s25")
        a(f"ds_write_b128 v18, {vr(out,4)} offset:{p*64}")
    a("s_waitcnt lgkmcnt(0)")
    for t in range(4):
        a(f"ds_read_b128 {vr(KR+4*t,4)}, v19 offset:{t*4*272}")
    a("s_waitcnt vmcnt(0)")
    if opt.get("stamp"):
        stamp(a, opt, 3)
        a("s_waitcnt lgkmcnt(0)")
    for e in range(8):
        a(f"v_lshlrev_b32 v{VS+e}, 16, v{VS+e}")
        a(f"v_lshlrev_b32 v{VS+8+e}, 16, v{VS+8+e}")
        a(f"v_mul_f32 v{VS+8+e}, v{VS+8+e}, v{VS+e}")
    for t in range(4):
        a(f"s_waitcnt lgkmcnt({3-t})")
        a(f"global_store_dwordx4 v22, {vr(KR+4*t,4)}, s[20:21] offset:{-4096+t*2048}{st}")
    VO = 64
    for b in range(4):
        for e in range(8):
            r = VR + 4 * e + b
            a(f"v_cvt_f32_i32 v{r}, v{r}")
        for e in range(8):
            r = VR + 4 * e + b
            a(f"v_fma_f32 v{r}, v{r}, v{VS+e}, -v{VS+8+e}")
        for m in range(4):
            a(f"v_cvt_pk_bf16_f32 v{VO+4*b+m}, v{VR+8*m+b}, v{VR+8*m+4+b}")
        a(f"global_store_dwordx4 v23, {vr(VO+4*b,4)}, s[20:21] offset:{b*1024}{st}")
    if opt.get("stamp"):
        stamp(a, opt, 4)
        a("s_waitcnt vmcnt(0)")
        stamp(a, opt, 5)
        stamp(a, opt, 6)
        stamp_flush(a, opt, 7, "s[20:21]", 2, 0)
    if opt.get("spin"):
        a("s_cmp_lg_u32 s2, 0")
        a("s_cbranch_scc1 L_prep_end")
        a("v_mov_b32 v2, s36")
        a("v_mov_b32 v3, s37")
        a("v_mov_b32 v4, 0x2000000")
        a("global_store_dwordx2 v4, v[2:3], s[20:21]")
    a.lab("L_prep_end")
    a("s_endpgm")


O_ = 0
S_ = 128
P_ = 160
M_ = 176
L_ = 208
VOFF = 212
VTID = 216
T_ = 220
QA = 0
KB = 64
VB = 128

LDS_X = 0
LDS_Q = 98304
LDS_ST = LDS_Q + 16896
LDS_MX = LDS_ST + 1024
LDS_TOTAL = LDS_MX + 1024

SRD = "s[8:11]"
S_K = "s20"
S_V = "s21"
S_T = "s22"
S_BASE = "s23"
S_CNT = "s24"
S_FLAG = "s25"
S_W = "s26"
S_BIG = "s27"
S_T0 = "s28"


def stamp(a, opt, idx):
    if not opt.get("stamp"):
        return
    b = 40 + 4 * idx
    a(f"s_memtime s[{b}:{b+1}]")
    a(f"s_memrealtime s[{b+2}:{b+3}]")


def stamp_flush(a, opt, n, wsreg, wave_expr_reg, slot):
    if not opt.get("stamp"):
        return
    a("s_waitcnt lgkmcnt(0)")
    a("s_lshl_b32 s38, s2, 2")
    a(f"v_add_u32 v250, s38, v{wave_expr_reg}")
    a("v_lshlrev_b32 v250, 7, v250")
    a(f"v_add_u32 v250, {hex(0x1000000 + slot * 0x40000)}, v250")
    for i in range(n):
        b = 40 + 4 * i
        for k in range(4):
            a(f"v_mov_b32 v{252+k}, s{b+k}")
        a(f"global_store_dwordx4 v250, v[252:255], {wsreg} offset:{16*i}")
        a("s_nop 1")
    a("s_getreg_b32 s38, hwreg(HW_REG_XCC_ID)")
    a("s_getreg_b32 s39, hwreg(HW_REG_HW_ID)")
    a("v_mov_b32 v252, s38")
    a("v_mov_b32 v253, s39")
    a(f"global_store_dwordx2 v250, v[252:253], {wsreg} offset:112")


def ldK(a, buf, j, opt):
    a(f"buffer_load_dwordx4 {ar(KB+32*buf+4*j,4)}, v{VOFF+(j>>2)}, {SRD}, {S_K} offen offset:{(j&3)*1024}")


def ldV(a, buf, n, opt):
    a(f"buffer_load_dwordx4 {ar(VB+32*buf+4*n,4)}, v{VOFF+2+(n>>2)}, {SRD}, {S_V} offen offset:{(n&3)*1024}")


def mf_qk(a, x, j, kbuf):
    c = vr(M_ + 16 * x, 16) if j == 0 else vr(S_ + 16 * x, 16)
    a(f"v_mfma_f32_32x32x16_bf16 {vr(S_+16*x,16)}, {ar(KB+32*kbuf+4*j,4)}, {ar(QA+32*x+4*j,4)}, {c}")


def mf_pv(a, x, n, vbuf):
    s, b = n >> 2, n & 3
    o = vr(O_ + 64 * x + 16 * b, 16)
    a(f"v_mfma_f32_32x32x16_bf16 {o}, {vr(P_+8*x+4*s,4)}, {ar(VB+32*vbuf+4*n,4)}, {o}")


def sm_exp(a, x, k, opt):
    sfx = "_e64" if opt.get("e64") else ""
    a(f"v_exp_f32{sfx} v{S_+16*x+k}, v{S_+16*x+k}")


def sm_add(a, x, k, opt):
    sfx = "_e64" if opt.get("e64") else ""
    a(f"v_add_f32{sfx} v{L_+2*x+(k&1)}, v{L_+2*x+(k&1)}, v{S_+16*x+k}")


def sm_cvt(a, x, m):
    a(f"v_cvt_pk_bf16_f32 v{P_+8*x+m}, v{S_+16*x+2*m}, v{S_+16*x+2*m+1}")


def next_tile(a):
    return [
        f"s_mov_b32 {S_V}, {S_K}",
        f"s_add_u32 {S_T}, {S_T}, 0x4000",
        f"s_and_b32 {S_T}, {S_T}, 0x3ffff",
        f"s_or_b32 {S_K}, {S_T}, {S_BASE}",
    ]


def iteration(a, par, opt):
    E0 = 10
    waits = {0: 16, 4: 14, 24: 20, 28: 18}
    for g in range(32):
        if g in waits:
            a(f"s_waitcnt vmcnt({waits[g]})")
        if g < 8:
            mf_qk(a, 0, g, par)
        elif g < 16:
            mf_pv(a, 1, g - 8, par ^ 1)
        elif g < 24:
            mf_qk(a, 1, g - 16, par)
        else:
            mf_pv(a, 0, g - 24, par)
        k = (g - E0) % 32
        sm_exp(a, k >> 4, k & 15, opt)
        k = (g - E0 - 1) % 32
        sm_add(a, k >> 4, k & 15, opt)
        if g % 2 == 0:
            k = (g - E0 - 2) % 32
            sm_cvt(a, k >> 4, (k & 15) >> 1)
        else:
            if 9 <= g <= 23:
                ldV(a, par ^ 1, (g - 9) // 2, opt)
            elif g >= 25:
                ldK(a, par, (g - 25) // 2, opt)
            else:
                ldK(a, par ^ 1, (g + 7) // 2, opt)
        if g == 8:
            a(f"s_mov_b32 {S_V}, {S_K}")
            a(f"s_add_u32 {S_T}, {S_T}, 0x4000")
        if g == 10:
            a(f"s_and_b32 {S_T}, {S_T}, 0x3ffff")
            a(f"s_cmp_eq_u32 {S_T}, {S_T0}")
        if g == 12:
            a(f"s_cselect_b32 {S_BASE}, {S_BIG}, {S_BASE}")
            a(f"s_or_b32 {S_K}, {S_T}, {S_BASE}")


def gen_attn(a, opt):
    a.raw(".p2align 8")
    a.raw(".globl attn_kernel")
    a.raw(".type attn_kernel,@function")
    a.lab("attn_kernel")
    a("s_cmp_ge_u32 s2, 256")
    a("s_cbranch_scc1 L_attn_end")
    stamp(a, opt, 0)
    a("s_load_dwordx2 s[8:9], s[0:1], 104")
    a("s_load_dwordx2 s[4:5], s[0:1], 0")
    a("s_load_dwordx4 s[12:15], s[0:1], 56")
    a("s_load_dwordx2 s[6:7], s[0:1], 88")
    a("s_mov_b32 s10, 0x800000")
    a("s_mov_b32 s11, 0x20000")
    a("s_and_b32 s16, s2, 7")
    a("s_lshr_b32 s17, s2, 3")
    t = T_
    lane, w, c16, ks = VTID, VTID + 1, t + 2, t + 3
    a(f"v_lshrrev_b32 v{w}, 6, v0")
    a(f"v_and_b32 v{lane}, 63, v0")
    a(f"v_readfirstlane_b32 {S_W}, v{w}")
    a(f"v_and_b32 v{c16}, 15, v{lane}")
    a(f"v_lshrrev_b32 v{ks}, 4, v{lane}")
    a("s_lshl_b32 s18, s17, 6")
    a("s_lshl_b32 s19, s16, 11")
    a("s_add_u32 s19, s19, s18")
    a(f"v_lshl_add_u32 v{t+4}, v{w}, 4, v{ks}")
    a(f"v_add_u32 v{t+5}, s18, v{t+4}")
    a(f"v_lshlrev_b32 v{t+5}, 8, v{t+5}")
    a(f"v_lshl_add_u32 v{t+5}, v{c16}, 3, v{t+5}")
    a("s_lshl_b32 s30, s16, 19")
    a(f"v_add_u32 v{t+6}, s30, v{t+5}")
    a(f"v_lshlrev_b32 v{VOFF}, 4, v{lane}")
    for k in range(1, 4):
        a(f"v_add_u32 v{VOFF+k}, {hex(4096*k)}, v{VOFF}")
    a(f"s_lshl_b32 s29, s16, 20")
    a(f"s_lshl_b32 s30, {S_W}, 18")
    a(f"s_or_b32 s29, s29, s30")
    if opt.get("rot", 1):
        a(f"s_and_b32 {S_T0}, s17, 15")
        a(f"s_lshl_b32 {S_T0}, {S_T0}, 14")
    else:
        a(f"s_mov_b32 {S_T0}, 0")
    a(f"s_mov_b32 {S_BIG}, 0x08000000")
    a(f"s_mov_b32 {S_FLAG}, 0")
    a("s_mov_b32 s31, 0xffff0000")
    a(f"s_mov_b32 s32, {hex(f32bits(math.log2(math.e) / math.sqrt(128.0)))}")
    a("s_waitcnt lgkmcnt(0)")
    for p in range(4):
        b = 12 * p
        a(f"global_load_dwordx2 {vr(b,2)}, v{t+6}, s[4:5] offset:{p*1024}")
        a(f"global_load_dwordx2 {vr(b+2,2)}, v{t+6}, s[4:5] offset:{p*1024+128}")
        a(f"global_load_dwordx2 {vr(b+4,2)}, v{t+5}, s[12:13] offset:{p*1024}")
        a(f"global_load_dwordx2 {vr(b+6,2)}, v{t+5}, s[12:13] offset:{p*1024+128}")
        a(f"global_load_dwordx2 {vr(b+8,2)}, v{t+5}, s[14:15] offset:{p*1024}")
        a(f"global_load_dwordx2 {vr(b+10,2)}, v{t+5}, s[14:15] offset:{p*1024+128}")

    def first_loads():
        a(f"s_mov_b32 {S_BASE}, s29")
        a(f"s_mov_b32 {S_T}, {S_T0}")
        a(f"s_or_b32 {S_K}, {S_T}, {S_BASE}")
        for j in range(8):
            ldK(a, 0, j, opt)
        for s_ in next_tile(a):
            a(s_)
        for n in range(8):
            ldV(a, 0, n, opt)
        for j in range(4):
            ldK(a, 1, j, opt)

    first_loads()
    for r in range(32):
        a(f"v_mov_b32 v{M_+r}, 0")
    a(f"v_lshrrev_b32 v{t+7}, 1, v{w}")
    a(f"v_mul_u32_u24 v{t+7}, 8448, v{t+7}")
    a(f"v_mul_u32_u24 v{t+8}, 528, v{c16}")
    a(f"v_add_u32 v{t+7}, v{t+7}, v{t+8}")
    a(f"v_and_b32 v{t+8}, 31, v{t+4}")
    a(f"v_lshl_add_u32 v{t+7}, v{t+8}, 4, v{t+7}")
    a(f"v_lshlrev_b32 v{t+9}, 3, v{w}")
    a(f"v_xor_b32 v{VTID+2}, v{t+9}, v{lane}")
    a(f"v_and_b32 v{t+8}, 31, v{VTID+2}")
    a(f"v_lshrrev_b32 v{t+9}, 5, v{lane}")
    a(f"v_mul_u32_u24 v{t+9}, 528, v{t+9}")
    a(f"v_lshl_add_u32 v{t+8}, v{t+8}, 4, v{t+9}")
    a(f"v_add_u32 v{t+7}, {LDS_Q}, v{t+7}")
    a(f"v_add_u32 v{t+8}, {LDS_Q}, v{t+8}")
    for p in range(4):
        b = 12 * p
        a(f"s_waitcnt vmcnt({20 + 6*(3-p)})")
        lo, hi = 64, 68
        for i in range(4):
            for (dst, src) in ((lo + i, b + (i >> 1)), (hi + i, b + 2 + (i >> 1))):
                if i & 1:
                    a(f"v_and_b32 v{dst}, s31, v{src}")
                else:
                    a(f"v_lshlrev_b32 v{dst}, 16, v{src}")
                a(f"v_mul_f32 v{dst}, s32, v{dst}")
        out = 80 + 4 * p
        rope4(a, lo, hi, b + 4, b + 6, b + 8, b + 10, out, 72, "s31")
        a(f"ds_write_b128 v{t+7}, {vr(out,4)} offset:{p*64}")
    a("s_waitcnt lgkmcnt(0)")
    stamp(a, opt, 1)
    a("s_barrier")
    for x in range(2):
        for j in range(8):
            a(f"ds_read_b128 {ar(QA+32*x+4*j,4)}, v{t+8} offset:{x*8448+j*1056}")
    a.lab("L_restart")
    for r in range(128):
        a(f"v_mov_b32 v{O_+r}, 0")
    for r in range(32):
        a(f"v_accvgpr_write_b32 a{VB+32+r}, 0")
    for r in range(4):
        a(f"v_mov_b32 v{L_+r}, 0")
    for r in range(2):
        a(f"v_mov_b32 v{P_+8+r}, 0")
    a(f"v_mov_b32 v{S_+16+4}, 0")
    a(f"v_mov_b32 v{S_+16+5}, 0")
    for r in range(6, 16):
        a(f"v_mov_b32 v{S_+16+r}, 0xff800000")
    a(f"s_mov_b32 {S_CNT}, 8")
    stamp(a, opt, 2)
    a("s_waitcnt lgkmcnt(0)")
    a.raw(".p2align 6")
    a.lab("L_loop")
    iteration(a, 0, opt)
    a(f"s_sub_u32 {S_CNT}, {S_CNT}, 1")
    iteration(a, 1, opt)
    a(f"s_cmp_lg_u32 {S_CNT}, 0")
    a("s_cbranch_scc1 L_loop")
    stamp(a, opt, 3)
    xa = [T_ + 10, T_ + 11, T_ + 12]
    sm_add(a, 1, 5, opt)
    sm_cvt(a, 1, 2)
    for k in range(6, 16):
        sm_exp(a, 1, k, opt)
    for u in range(1, 4):
        a(f"s_xor_b32 s33, {S_W}, {u}")
        a(f"s_mul_i32 s33, s33, {3*8192}")
        a(f"s_add_u32 s33, s33, {(u-1)*8192 + LDS_X}")
        a(f"v_add_u32 v{xa[u-1]}, s33, v{VOFF}")
    for m in range(3, 8):
        sm_cvt(a, 1, m)
    for k in range(6, 16):
        sm_add(a, 1, k, opt)
    wl = [(u, b) for u in range(1, 4) for b in range(4)]
    for n in range(8):
        mf_pv(a, 1, n, 1)
        for (u, b) in wl[n * 2:n * 2 + 2]:
            a(f"ds_write_b128 v{xa[u-1]}, {vr(O_+16*b+4*u,4)} offset:{b*1024}")
    a(f"v_add_f32 v{L_}, v{L_}, v{L_+1}")
    a(f"v_add_f32 v{L_+2}, v{L_+2}, v{L_+3}")
    a(f"v_lshlrev_b32 v{t+13}, 2, v{VTID+2}")
    a(f"s_lshl_b32 s33, {S_W}, 8")
    a(f"v_permlane32_swap_b32 v{L_}, v{L_+2}")
    a(f"s_add_u32 s33, s33, {LDS_ST}")
    a(f"v_add_u32 v{t+13}, s33, v{t+13}")
    a(f"v_add_f32 v{L_}, v{L_}, v{L_+2}")
    a(f"ds_write_b32 v{t+13}, v{L_}")
    a(f"s_mul_i32 s33, {S_W}, {3*8192}")
    a(f"v_add_u32 v{t+14}, s33, v{VOFF}")
    a(f"v_lshlrev_b32 v{t+15}, 2, v{lane}")
    a(f"v_add_u32 v{t+15}, {LDS_ST}, v{t+15}")
    a(f"v_lshrrev_b32 v{t+16}, 5, v{lane}")
    a(f"s_lshl_b32 s33, {S_W}, 5")
    a(f"s_add_u32 s33, s33, {LDS_ST}")
    a(f"v_lshl_add_u32 v{t+17}, v{t+16}, 4, s33")
    a("s_nop 1")
    for (u, b) in wl:
        a(f"ds_write_b128 v{xa[u-1]}, {vr(O_+64+16*b+4*u,4)} offset:{4096+b*1024}")
    a("s_waitcnt vmcnt(0) lgkmcnt(0)")
    stamp(a, opt, 4)
    if opt.get("stamp"):
        a("s_waitcnt lgkmcnt(0)")
    a("s_barrier")
    for ww in range(4):
        a(f"ds_read_b32 v{S_+ww}, v{t+15} offset:{ww*256}")
    for x in range(2):
        for ww in range(4):
            a(f"ds_read_b128 {vr(M_+16*x+4*ww,4)}, v{t+17} offset:{ww*256+x*128}")
    a("s_waitcnt lgkmcnt(8)")
    a(f"v_add_f32 v{S_}, v{S_}, v{S_+1}")
    a(f"v_add_f32 v{S_+2}, v{S_+2}, v{S_+3}")
    a(f"v_add_f32 v{S_}, v{S_}, v{S_+2}")
    a(f"s_mov_b32 s33, {hex(f32bits(2.0**-30))}")
    a(f"s_mov_b32 s34, {hex(f32bits(2.0**30))}")
    a(f"v_cmp_nle_f32 vcc, s33, v{S_}")
    a(f"v_cmp_nge_f32 s[36:37], s34, v{S_}")
    a("s_nop 1")
    a("s_or_b64 vcc, vcc, s[36:37]")
    a("s_cmp_eq_u64 vcc, 0")
    a("s_cbranch_scc1 L_good")
    a(f"s_cmp_eq_u32 {S_FLAG}, 0")
    a("s_cbranch_scc1 L_fallback")
    a.lab("L_good")
    for u in range(1, 4):
        for x in range(2):
            for b in range(4):
                a(f"ds_read_b128 {vr(O_+64*x+16*b+4*u,4)}, v{t+14} offset:{(u-1)*8192+x*4096+b*1024}")
        if u == 1:
            a("s_waitcnt lgkmcnt(8)")
            for x in range(2):
                m = M_ + 16 * x
                for i in (0, 2):
                    a(f"v_pk_add_f32 {vr(m+i,2)}, {vr(m+i,2)}, {vr(m+4+i,2)}")
                    a(f"v_pk_add_f32 {vr(m+8+i,2)}, {vr(m+8+i,2)}, {vr(m+12+i,2)}")
                for i in (0, 2):
                    a(f"v_pk_add_f32 {vr(m+i,2)}, {vr(m+i,2)}, {vr(m+8+i,2)}")
                for i in range(4):
                    a(f"v_rcp_f32 v{m+i}, v{m+i}")
    a(f"s_lshl_b32 s33, {S_W}, 3")
    a("s_add_u32 s33, s33, s19")
    a(f"v_lshl_add_u32 v{t+18}, v{t+16}, 2, s33")
    a(f"v_lshlrev_b32 v{t+18}, 8, v{t+18}")
    a(f"v_and_b32 v{t+19}, 31, v{lane}")
    a(f"v_lshl_add_u32 v{t+18}, v{t+19}, 3, v{t+18}")
    a(f"v_add_u32 v{t+19}, 0x2000, v{t+18}")
    a("s_waitcnt lgkmcnt(0)")
    for x in range(2):
        for b in range(4):
            o = O_ + 64 * x + 16 * b
            for i in (0, 2):
                a(f"v_pk_add_f32 {vr(o+i,2)}, {vr(o+i,2)}, {vr(o+4+i,2)}")
                a(f"v_pk_add_f32 {vr(o+8+i,2)}, {vr(o+8+i,2)}, {vr(o+12+i,2)}")
            for i in (0, 2):
                a(f"v_pk_add_f32 {vr(o+i,2)}, {vr(o+i,2)}, {vr(o+8+i,2)}")
            for i in (0, 2):
                a(f"v_pk_mul_f32 {vr(o+i,2)}, {vr(o+i,2)}, {vr(M_+16*x+i,2)}")
        for i in range(4):
            o = O_ + 64 * x
            d = S_ + 8 * x + 2 * i
            a(f"v_cvt_pk_bf16_f32 v{d}, v{o+i}, v{o+16+i}")
            a(f"v_cvt_pk_bf16_f32 v{d+1}, v{o+32+i}, v{o+48+i}")
            a(f"global_store_dwordx2 v{t+18+x}, {vr(d,2)}, s[6:7] offset:{i*256}")
    if opt.get("stamp"):
        stamp(a, opt, 5)
        a("s_waitcnt vmcnt(0)")
        stamp(a, opt, 6)
        stamp_flush(a, opt, 7, "s[8:9]", VTID + 1, 1)
    if opt.get("spin"):
        a("s_add_u32 s34, s8, 0x2000000")
        a("s_addc_u32 s35, s9, 0")
        a("s_load_dwordx2 s[36:37], s[34:35], 0")
        a("s_waitcnt lgkmcnt(0)")
        a.lab("L_spin")
        a("s_memrealtime s[38:39]")
        a("s_waitcnt lgkmcnt(0)")
        a("s_sub_u32 s38, s38, s36")
        a(f"s_cmp_lt_u32 s38, {opt['spin']*100}")
        a("s_cbranch_scc1 L_spin")
    a.lab("L_attn_end")
    a("s_endpgm")

    a.lab("L_fallback")
    a(f"s_mov_b32 {S_FLAG}, 1")
    a("s_waitcnt lgkmcnt(0)")
    a(f"v_mov_b32 v{L_}, 0xff800000")
    a(f"v_mov_b32 v{L_+2}, 0xff800000")
    a(f"s_mov_b32 {S_K}, s29")
    a(f"s_mov_b32 {S_CNT}, 16")
    a.lab("L_maxloop")
    for j in range(8):
        ldK(a, 0, j, opt)
    a("s_waitcnt vmcnt(0)")
    for x in range(2):
        for j in range(8):
            c = "0" if j == 0 else vr(S_ + 16 * x, 16)
            a(f"v_mfma_f32_32x32x16_bf16 {vr(S_+16*x,16)}, {ar(KB+4*j,4)}, {ar(QA+32*x+4*j,4)}, {c}")
    a("s_nop 15")
    for x in range(2):
        for k in range(0, 16, 2):
            a(f"v_max3_f32 v{L_+2*x}, v{L_+2*x}, v{S_+16*x+k}, v{S_+16*x+k+1}")
    a(f"s_add_u32 {S_K}, {S_K}, 0x4000")
    a(f"s_sub_u32 {S_CNT}, {S_CNT}, 1")
    a(f"s_cmp_lg_u32 {S_CNT}, 0")
    a("s_cbranch_scc1 L_maxloop")
    a("s_nop 1")
    a(f"v_permlane32_swap_b32 v{L_}, v{L_+2}")
    a("s_nop 1")
    a(f"v_max_f32 v{L_}, v{L_}, v{L_+2}")
    a(f"ds_write_b32 v{t+13}, v{L_} offset:{LDS_MX-LDS_ST}")
    a(f"v_lshlrev_b32 v{t+20}, 2, v{VTID+2}")
    a(f"v_add_u32 v{t+20}, {LDS_MX}, v{t+20}")
    a("s_waitcnt lgkmcnt(0)")
    a("s_barrier")
    for ww in range(4):
        a(f"ds_read_b32 v{S_+ww}, v{t+20} offset:{ww*256}")
    a("s_waitcnt lgkmcnt(0)")
    a(f"v_max3_f32 v{S_}, v{S_}, v{S_+1}, v{S_+2}")
    a(f"v_max_f32 v{S_}, v{S_}, v{S_+3}")
    a(f"v_sub_f32 v{S_}, 0, v{S_}")
    a(f"v_mov_b32 v{S_+1}, v{S_}")
    a("s_nop 1")
    a(f"v_permlane32_swap_b32 v{S_}, v{S_+1}")
    a("s_nop 1")
    for r in range(32):
        a(f"v_mov_b32 v{M_+r}, v{S_+(r>>4)}")
    first_loads()
    a("s_branch L_restart")


def build(opt):
    a = A()
    a.raw(HEADER.rstrip())
    a.raw("; @launch kernel=prep_kernel grid=(256,1,1) block=(256,1,1) lds=17408")
    a.raw(f"; @launch kernel=attn_kernel grid=(256,1,1) block=(256,1,1) lds={LDS_TOTAL}")
    for _ in range(opt.get("empty", 0)):
        a.raw("; @launch kernel=empty_kernel grid=(256,1,1) block=(256,1,1) lds=0")
    a.raw('.amdgcn_target "amdgcn-amd-amdhsa--gfx950"')
    a.raw(".text")
    if opt.get("empty"):
        a.raw(".p2align 8")
        a.raw(".globl empty_kernel")
        a.raw(".type empty_kernel,@function")
        a.lab("empty_kernel")
        a("s_endpgm")
    gen_prep(a, opt)
    gen_attn(a, opt)
    a.raw('.section .rodata,"a"')
    ns = 80 if opt.get("stamp") else 40
    a.raw(kd("prep_kernel", 256 if opt.get("stamp") else 192, ns, 256 if opt.get("stamp") else 192))
    a.raw(kd("attn_kernel", 512, ns, 256))
    if opt.get("empty"):
        a.raw(kd("empty_kernel", 8, 8, 8))
    return a.text()


if __name__ == "__main__":
    opt = {}
    out = f"cdna_kernels/{NAME}.s"
    for arg in sys.argv[1:]:
        k, _, v = arg.partition("=")
        if k == "out":
            out = v
        else:
            try:
                v = int(v)
            except ValueError:
                pass
            opt[k] = v
    open(out, "w").write(build(opt))
    print("wrote", out)
```
